```python
import torch

def _softmax(x, axis=-1):
    return torch.softmax(x, dim=axis)
def _gelu(x):
    return torch.nn.functional.gelu(x, approximate="tanh")
def _silu(x):
    return torch.nn.functional.silu(x)
def _sigmoid(x):
    return torch.sigmoid(x)
def _layernorm(x, axis=-1, eps=1e-5):
    m = x.mean(dim=axis, keepdim=True)
    v = x.var(dim=axis, keepdim=True, unbiased=False)
    return (x - m) / torch.sqrt(v + eps)
def _scatter_add(tgt, idx, src, axis=0):
    return tgt.clone().index_add_(axis, idx, src)
def _segment_sum(src, seg, n):
    out = torch.zeros((n,) + src.shape[1:], dtype=src.dtype)
    return out.index_add_(0, seg, src)
def _pad(x, pw):
    flat = tuple(v for pair in reversed(pw) for v in pair)
    return torch.nn.functional.pad(x, flat)

kernel_name = 'parallel_sum__ssm_conv_h3__dense_activation_silu__prompt'

def setup_inputs():

    _w = (lambda a: (lambda t: t.to(torch.bfloat16) if t.is_floating_point() else t)(torch.as_tensor(a)))
    def _A_setup():
        B, S, D = 1, 2048, 448
        ks = 4
        return {
            "q": _w((lambda *s: torch.randn(*s, dtype=torch.bfloat16) * 0.05)(B, S, D)),
            "k": _w((lambda *s: torch.randn(*s, dtype=torch.bfloat16) * 0.2)(B, S, D)),
            "v": _w((lambda *s: torch.randn(*s, dtype=torch.bfloat16) * 0.2)(B, S, D)),
            "shift_k": _w((lambda *s: torch.randn(*s, dtype=torch.bfloat16) * 0.2)(D, ks) * 0.5),
            "ssm_k": _w((lambda *s: torch.randn(*s, dtype=torch.bfloat16) * 0.4)(D, S) * (1.0 / S ** 0.5)),
            "ssm_D": _w((lambda *s: torch.randn(*s, dtype=torch.bfloat16) * 0.2)(D)),
        }
    _A_in = _A_setup()

    def _B_setup():
        B, S, D, F = 1, 2048, 448, 1792
        return {
            "x": _w((lambda *s: torch.randn(*s, dtype=torch.bfloat16) * 0.05)(B, S, D)),
            "w1": _w((lambda *s: torch.randn(*s, dtype=torch.bfloat16) * 0.8)(D, F) * (D ** -0.5)),
            "w2": _w((lambda *s: torch.randn(*s, dtype=torch.bfloat16) * 0.1)(F, D) * (F ** -0.5)),
        }
    _B_in = _B_setup()

    return {
        "A_q": _A_in["q"],
        "A_k": _A_in["k"],
        "A_v": _A_in["v"],
        "A_shift_k": _A_in["shift_k"],
        "A_ssm_k": _A_in["ssm_k"],
        "A_ssm_D": _A_in["ssm_D"],
        "B_x": _B_in["x"],
        "B_w1": _B_in["w1"],
        "B_w2": _B_in["w2"],
    }

def reference(A_q, A_k, A_v, A_shift_k, A_ssm_k, A_ssm_D, B_x, B_w1, B_w2):
    def _A_ref(q, k, v, shift_k, ssm_k, ssm_D):
        B, S, D = q.shape
        ks = shift_k.shape[-1]
        k_pad = _pad(k, ((0, 0), (ks - 1, 0), (0, 0)))
        k_shift = torch.zeros_like(k)
        for t in range(ks):
            k_shift = k_shift + k_pad[:, t:t + S, :] * shift_k[:, ks - 1 - t][None, None, :]
        kv = k_shift * v
        L = 2 * S
        kv_pad = _pad(kv, ((0, 0), (0, S), (0, 0)))
        kf_pad = _pad(ssm_k, ((0, 0), (0, S)))
        kv_f = (lambda x, axes=(-2,-1): torch.fft.rfft2(x.float(), dim=axes))(kv_pad[:, None, :, :], axes=(1, 2))
        kf_f = (lambda x, axes=(-2,-1): torch.fft.rfft2(x.float(), dim=axes))(kf_pad[:, None, :], axes=(1, 2))
        kf_f = (lambda x, *d: x.permute(*d))(kf_f, 1, 2, 0)
        y_f = kv_f * kf_f[None, :, :, :]
        y = (lambda x, s, axes=(-2,-1): torch.fft.irfft2(x, s=s, dim=axes).to(torch.bfloat16))(y_f, (1, L), axes=(1, 2))[:, 0, :S, :]
        y = y + kv * ssm_D[None, None, :]
        return q * y

    def _B_ref(x, w1, w2):
        h = torch.einsum("bsd,df->bsf", x, w1)
        h = _silu(h)
        out = torch.einsum("bsf,fd->bsd", h, w2)
        return out

    x = A_q
    xn = _layernorm(x, axis=-1)
    return x + _A_ref(xn, A_k, A_v, A_shift_k, A_ssm_k, A_ssm_D) + _B_ref(xn, B_w1, B_w2)
```

```python
import re

TRANS = ('v_exp_f32', 'v_log_f32', 'v_rcp_f32', 'v_rsq_f32', 'v_sqrt_f32', 'v_sin_f32', 'v_cos_f32')


def v(a, n=1):
    return f'v{a}' if n == 1 else f'v[{a}:{a+n-1}]'


def s(a, n=1):
    return f's{a}' if n == 1 else f's[{a}:{a+n-1}]'


_REG = re.compile(r'^(-|abs\()?([vsa])(?:\[(\d+):(\d+)\]|(\d+))\)?$')


def parse_reg(tok):
    tok = tok.strip()
    if tok in ('vcc',):
        return {('s', 106), ('s', 107)}
    if tok == 'vcc_lo':
        return {('s', 106)}
    if tok == 'vcc_hi':
        return {('s', 107)}
    if tok == 'exec':
        return {('s', 126), ('s', 127)}
    if tok == 'm0':
        return {('s', 124)}
    m = _REG.match(tok)
    if not m:
        return set()
    k = m.group(2)
    if m.group(5) is not None:
        return {(k, int(m.group(5)))}
    return {(k, i) for i in range(int(m.group(3)), int(m.group(4)) + 1)}


class Inst:
    __slots__ = ('text', 'op', 'ops', 'kind', 'dst', 'src', 'passes', 'srcC', 'srcAB', 'states', 'mods', 'storedata')

    def __init__(self, text):
        self.text = text
        t = text.split(';')[0].strip()
        parts = t.split(None, 1)
        self.op = parts[0]
        rest = parts[1] if len(parts) > 1 else ''
        ops = [o.strip() for o in rest.split(',')] if rest else []
        mods = ''
        if ops:
            last = ops[-1].split(None, 1)
            if len(last) > 1 and not ops[-1].startswith('vmcnt') and not ops[-1].startswith('lgkmcnt'):
                ops[-1] = last[0]
                mods = last[1]
        self.ops = ops
        self.mods = mods
        self.passes = 0
        self.srcC = set()
        self.srcAB = set()
        self.storedata = set()
        self.states = 1
        op = self.op
        R = [parse_reg(o) for o in ops]
        allr = set().union(*R) if R else set()
        self.dst, self.src = set(), set()
        if op == 's_nop':
            self.kind = 'nop'
            self.states = int(ops[0], 0) + 1
        elif op.startswith('v_mfma'):
            self.kind = 'mfma'
            self.passes = 8 if '32x32' in op else 4
            self.dst = R[0]
            self.srcAB = R[1] | R[2]
            self.srcC = R[3]
            self.src = self.srcAB | self.srcC
        elif op.startswith('ds_'):
            self.kind = 'ds'
            if op.startswith('ds_read') or op.startswith('ds_bpermute') or op.startswith('ds_swizzle'):
                self.dst = R[0]
                self.src = set().union(*R[1:])
            else:
                self.src = allr
        elif op.startswith('buffer_') or op.startswith('global_'):
            self.kind = 'vmem'
            islds = ' lds' in (' ' + mods)
            if 'load' in op and not islds:
                self.dst = R[0]
                self.src = set().union(*R[1:])
            elif 'load' in op and islds:
                self.src = allr | {('s', 124)}
                self.kind = 'dma'
            else:
                self.src = allr
                if op.startswith('buffer_store'):
                    dat = R[0]
                else:
                    dat = R[1]
                if op.endswith('x4') or op.endswith('x3'):
                    self.storedata = dat
        elif op.startswith('v_'):
            self.kind = 'valu'
            if op.startswith('v_cmp'):
                self.dst = R[0]
                self.src = set().union(*R[1:])
            elif op.startswith('v_permlane') or op.startswith('v_swap'):
                self.dst = R[0] | R[1]
                self.src = R[0] | R[1]
            elif op.startswith('v_fmac') or op.startswith('v_dot2c'):
                self.dst = R[0]
                self.src = allr
            elif op.startswith('v_add_co') or op.startswith('v_addc_co') or op.startswith('v_sub_co'):
                self.dst = R[0] | R[1]
                self.src = set().union(*R[2:])
            else:
                self.dst = R[0]
                self.src = set().union(*R[1:]) if len(R) > 1 else set()
                if op.startswith('v_cndmask') and len(ops) == 3:
                    self.src |= {('s', 106), ('s', 107)}
                if 'dpp' in op or 'quad_perm' in mods or 'row_' in mods or 'wave_' in mods:
                    self.src |= R[0]
        elif op.startswith('s_'):
            self.kind = 'salu'
            if op.startswith(('s_cmp', 's_cbranch', 's_branch', 's_waitcnt', 's_barrier', 's_endpgm', 's_setprio', 's_sleep')):
                self.src = allr
            else:
                self.dst = R[0] if R else set()
                self.src = set().union(*R[1:]) if len(R) > 1 else set()
        else:
            self.kind = 'other'

    def is_dpp(self):
        return self.kind == 'valu' and ('dpp' in self.op or 'quad_perm' in self.mods or 'row_' in self.mods or 'wave_' in self.mods)


def vonly(x):
    return {r for r in x if r[0] in 'va'}


def sonly(x):
    return {r for r in x if r[0] == 's'}


def need_states(p, c):
    n = 0
    pv = vonly(p.dst)
    if p.kind == 'valu':
        isdot = p.op.startswith('v_dot')
        if c.kind == 'mfma' and pv & c.src:
            n = max(n, 3 if isdot else 2)
        if isdot and (pv & (vonly(c.src) | vonly(c.dst))):
            if c.op == p.op and c.kind == 'valu':
                ab = parse_reg(c.ops[1]) | parse_reg(c.ops[2])
                if pv & ab:
                    n = max(n, 3)
            else:
                n = max(n, 3)
        if p.op.startswith(TRANS) and c.kind == 'valu' and not c.op.startswith(TRANS) and pv & c.src:
            n = max(n, 1)
        if p.op.startswith(TRANS) and c.kind != 'valu' and pv & c.src:
            n = max(n, 1)
        if c.kind == 'valu' and c.op.startswith('v_permlane') and pv & c.src:
            n = max(n, 2)
        if c.is_dpp() and pv & c.src:
            n = max(n, 2)
        if c.kind == 'valu' and c.op.startswith(('v_readlane', 'v_readfirstlane')) and pv & c.src:
            n = max(n, 1)
        ps = sonly(p.dst)
        if ps:
            if c.kind == 'valu' and ps & c.src:
                n = max(n, 4 if c.op.startswith(('v_readlane', 'v_writelane')) else 2)
            if c.kind in ('vmem', 'dma') and ps & c.src:
                n = max(n, 5)
            if c.kind == 'salu' and ps & c.src:
                n = max(n, 1)
    if p.kind == 'mfma':
        big = p.passes == 8
        if c.kind == 'mfma':
            if pv & c.srcAB:
                n = max(n, 12 if big else 8)
            if pv & c.srcC:
                if not (c.srcC == pv and c.passes == p.passes):
                    n = max(n, 10 if big else 6)
            elif pv & c.dst:
                n = max(n, 12 if big else 8)
        elif c.kind in ('valu', 'ds', 'vmem', 'dma'):
            if pv & (vonly(c.src) | vonly(c.dst)):
                n = max(n, 12 if big else 8)
        if c.kind == 'valu' and p.srcC & c.dst:
            n = max(n, 7 if big else 3)
    if p.kind == 'salu' and ('s', 124) in p.dst and c.kind == 'dma':
        n = max(n, 1)
    if p.storedata and (p.storedata & c.dst):
        n = max(n, 2 if c.kind == 'valu' else 1)
    return n


class Asm:
    def __init__(self):
        self.items = []
        self.vm = []
        self.lg = []
        self.maxv = -1
        self.maxs = -1

    def raw(self, text):
        self.items.append(text)

    def label(self, name):
        self.items.append(name + ':')

    def comment(self, t):
        self.items.append('    ; ' + t)

    def __call__(self, text, tag=None, cond=False):
        i = Inst(text)
        if cond:
            i.states = 0
        self.items.append(i)
        if i.kind in ('vmem', 'dma'):
            self.vm.append(tag)
            assert len(self.vm) <= 63, 'too many VMEM outstanding'
        elif i.kind == 'ds':
            self.lg.append(tag)
        for k, n in (i.dst | i.src):
            if k == 'v':
                self.maxv = max(self.maxv, n)
            if k == 's' and n < 102:
                self.maxs = max(self.maxs, n)
        return i

    def _wait(self, lst, tags, name, cap):
        if not isinstance(tags, (list, set)):
            tags = [tags]
        idx = -1
        for j, t in enumerate(lst):
            if t in tags:
                idx = j
        if idx < 0:
            return None
        n = len(lst) - 1 - idx
        del lst[:idx + 1]
        if n > cap:
            del lst[:n - cap]
            n = cap
        return n

    def wait(self, vm=None, lg=None):
        parts = []
        if vm is not None:
            n = self._wait(self.vm, vm, 'vmcnt', 63)
            if n is not None:
                parts.append(f'vmcnt({n})')
        if lg is not None:
            n = self._wait(self.lg, lg, 'lgkmcnt', 15)
            if n is not None:
                parts.append(f'lgkmcnt({n})')
        if parts:
            self('s_waitcnt ' + ' '.join(parts))

    def wait_vm0(self):
        self.vm = []
        self('s_waitcnt vmcnt(0)')

    def wait_lg0(self):
        self.lg = []
        self('s_waitcnt lgkmcnt(0)')

    def wait_all(self):
        self.vm = []
        self.lg = []
        self('s_waitcnt vmcnt(0) lgkmcnt(0)')

    def render(self, pad=True):
        out = []
        hist = []
        npad = 0
        for it in self.items:
            if isinstance(it, str):
                out.append(it)
                continue
            if pad:
                need = 0
                dist = 0
                for p in reversed(hist):
                    if dist >= 20:
                        break
                    r = need_states(p, it) - dist
                    if r > need:
                        need = r
                    dist += p.states
                while need > 0:
                    k = min(need, 16)
                    nop = Inst(f's_nop {k-1}')
                    hist.append(nop)
                    out.append('    ' + nop.text)
                    need -= k
                    npad += 1
            hist.append(it)
            out.append('    ' + it.text)
        self.npad = npad
        return '\n'.join(out) + '\n'
```

```python
from asmlib import v, s
import struct

H_OFF, FLAG_OFF, YT_OFF = 0x400000, 0xC00000, 0x200000
LOG2E = 1.4426950408889634


def f32(x):
    return '0x%08x' % struct.unpack('<I', struct.pack('<f', x))[0]


WSLOT = 8192
BNC = 57344
BSTR = 1056
HI = 65536
STATS = 77824 - HI
CSUM01 = 78848 - HI
CSUM23 = 79872 - HI
REG2 = 20480
ZSLOT = 9 * 2048

Q = 16
ACC = 128
WB = 192
SEL = 208
RS = 212
CS = (216, 220)
CA = 224
CB = 228
TMP = 232
QE = 248
vWRD, vBW, vBR, vDMA, vL16 = 1, 2, 3, 4, 5
vQO = 6
vSQ, vC2, vT, vFLG, vMF, vRSTD = 10, 11, 12, 13, 14, 15

sQ, sW1, sW2, sH, sFL, sDBG, sOUT, sYT = 32, 36, 40, 44, 48, 52, 56, 60
sR, sCB, sCT, sJX, sRB64 = 64, 65, 66, 67, 68
sKC = 69
sT0, sT1, sT2, sT3 = 70, 71, 72, 73
sWB = 74
sM0 = 75
sTAG = 77
sK = 76
sKCOFF = 90
sHB = (97, 98)
sW2B = (99, 100)
sCNT = 101


class Fill:
    def __init__(self, a):
        self.a = a
        self.q = []

    def add(self, text, cost=4, tag=None, wait=None):
        self.q.append((text, cost, tag, wait))

    def drain(self, budget):
        while self.q and budget > 0:
            text, cost, tag, wait = self.q.pop(0)
            if wait:
                self.a.wait(**wait)
            if text:
                self.a(text, tag=tag)
            budget -= cost

    def flush(self):
        self.drain(1 << 30)


def epilogue_tile(fl, t, sbase):
    A = ACC + 16 * t
    for gp in range(2):
        for h4 in range(2):
            r = [A + 8 * gp + 4 * h4 + i for i in range(4)]
            tm = [TMP + 4 * ((2 * gp + h4) & 1) + i for i in range(4)]
            for x in r:
                fl.add(f'v_mul_f32 v{x}, v{vC2}, v{x}')
            for x, y in zip(r, tm):
                fl.add(f'v_exp_f32 v{y}, v{x}', 8)
            for y in tm:
                fl.add(f'v_fma_f32 v{y}, v{y}, s{sK}, s{sK}')
            for y in tm:
                fl.add(f'v_rcp_f32 v{y}, v{y}', 8)
            for x, y in zip(r, tm):
                fl.add(f'v_mul_f32 v{x}, v{x}, v{y}')
            d = A + 8 * gp + 2 * h4
            fl.add(f'v_cvt_pk_bf16_f32 v{d}, v{r[0]}, v{r[1]}')
            fl.add(f'v_cvt_pk_bf16_f32 v{d+1}, v{r[2]}, v{r[3]}')
        u = 4 * (t >> 1) + 2 * (t & 1) + gp
        off = u * 1024
        if off < 4096:
            fl.add(f'buffer_store_dwordx4 {v(A+8*gp,4)}, v{vL16}, {s(sH,4)}, s{sbase} offen offset:{off} sc1', 4, tag=('hst', t >> 1))
        else:
            fl.add(f'buffer_store_dwordx4 {v(A+8*gp,4)}, v{vL16}, {s(sH,4)}, s{sbase+1} offen offset:{off-4096} sc1', 4, tag=('hst', t >> 1))


def corr_tile(fl, t, src):
    fl.add(f'v_add_f32 v{src}, v{src}, v{src+1}')
    fl.add(f'v_add_f32 v{src+2}, v{src+2}, v{src+3}')
    fl.add(f'v_add_f32 v{src}, v{src}, v{src+2}')
    fl.add(f'v_cvt_pk_bf16_f32 v{src+1}, v{src}, v{src}')
    fl.add(f'v_and_b32 v{src+1}, 0xffff0000, v{src+1}')
    fl.add(f'v_sub_f32 v{src}, v{src}, v{src+1}')
    fl.add(f'v_cvt_pk_bf16_f32 v{src}, v{src+1}, v{src}')
    fl.add(f'v_cndmask_b32 v{CA}, 0, v{src}, vcc')
    A = ACC + 16 * t
    fl.add(f'v_mfma_f32_32x32x16_bf16 {v(A,16)}, {v(CA,4)}, {v(CB,4)}, {v(A,16)}', 32)


def role_f(g):
    a = g.a
    a('s_setprio 2')
    a('s_memrealtime s[62:63]')
    a('s_and_b32 s70, s2, 7')
    a('s_lshr_b32 s71, s2, 3')
    a(f's_and_b32 s{sJX}, s70, 1')
    a('s_lshr_b32 s70, s70, 1')
    a('s_mul_i32 s72, s71, 37')
    a('s_lshr_b32 s72, s72, 8')
    a('s_mul_i32 s73, s72, 7')
    a(f's_sub_u32 s{sCT}, s71, s73')
    a('s_lshl_b32 s70, s70, 2')
    a(f's_add_u32 s{sR}, s70, s72')
    a(f's_mul_i32 s70, s{sJX}, 7')
    a(f's_add_u32 s{sCB}, s70, s{sCT}')
    a(f's_lshl_b32 s70, s{sR}, 1')
    a(f's_add_u32 s{sRB64}, s70, s{sJX}')
    for c in range(7):
        a(f's_add_u32 s70, s{sCT}, {1+c}')
        a('s_sub_u32 s71, s70, 7')
        a(f's_cselect_b32 s{sKCOFF+c}, s70, s71')
    a('v_lshrrev_b32 v10, 3, v0')
    a('v_and_b32 v11, 7, v0')
    a(f'v_mul_u32_u24 v{vQO}, 896, v10')
    a(f'v_lshl_add_u32 v{vQO}, v11, 4, v{vQO}')
    for gq in range(1, 4):
        a(f'v_add_u32 v{vQO+gq}, {gq*8*896}, v{vQO}')
    a('v_lshrrev_b32 v12, 2, v0')
    a('v_and_b32 v14, 3, v0')
    a(f'v_mul_u32_u24 v{vDMA}, 3584, v12')
    a(f'v_lshl_add_u32 v{vDMA}, v14, 4, v{vDMA}')
    a(f'v_lshlrev_b32 v{vL16}, 4, v0')
    a('v_cmp_eq_u32 vcc, 0, v0')
    a(f'v_mov_b32 v{vFLG}, 0x7fffffff')
    a(f'v_cndmask_b32 v{vFLG}, v{vFLG}, 0, vcc')
    a(f's_lshl_b32 s70, s{sR}, 2')
    a('s_add_u32 s70, s70, s28')
    a('s_mul_i32 s72, s70, 32*896')
    a(f's_mul_i32 s{sHB[0]}, s70, 112*1024')
    a(f's_lshl_b32 s71, s{sCB}, 13')
    a(f's_add_u32 s{sHB[0]}, s{sHB[0]}, s71')
    a(f's_add_u32 s{sHB[1]}, s{sHB[0]}, 4096')
    a(f's_mul_i32 s{sWB}, s28, 16*3584')
    a(f's_lshl_b32 s71, s{sCB}, 8')
    a(f's_add_u32 s{sWB}, s{sWB}, s71')
    a(f's_lshl_b32 s{sM0}, s28, 10')
    a('s_waitcnt lgkmcnt(0)')
    g.stamp()
    g.srd(sQ, 4, 5, 2048 * 896)
    g.srd(sW1, 18, 19, 448 * 3584)
    g.srd(sDBG, 24, 25, 256)
    ln = g.lab('NONONCE')
    a('s_or_b32 s70, s2, s28')
    a('s_cmp_eq_u32 s70, 0')
    a(f's_cbranch_scc0 {ln}')
    a.raw('    s_or_b32 s70, s62, 1')
    a.raw('    v_mov_b32 v12, s70')
    a.raw(f'    buffer_store_dword v12, v{vFLG}, {s(sDBG,4)}, 0 offen sc1')
    a.label(ln)

    def w1_dma(h, c, tag):
        a(f's_mul_i32 s70, s{sKCOFF+c}, 64*3584')
        a(f's_add_u32 m0, s{sM0}, {c*WSLOT}')
        a(f's_add_u32 s70, s70, s{sWB}')
        if h:
            a('s_add_u32 s70, s70, 128')
        a(f'buffer_load_dwordx4 v{vDMA}, {s(sW1,4)}, s70 offen lds', tag=tag)
        a(f's_add_u32 m0, s{sM0}, {c*WSLOT+4096}')
        a('s_add_u32 s70, s70, 64')
        a(f'buffer_load_dwordx4 v{vDMA}, {s(sW1,4)}, s70 offen lds', tag=tag)

    for c in range(7):
        a(f's_lshl_b32 s71, s{sKCOFF+c}, 7')
        a('s_add_u32 s71, s71, s72')
        for gq in range(4):
            a(f'buffer_load_dwordx4 {v(Q+16*c+4*gq,4)}, v{vQO+gq}, {s(sQ,4)}, s71 offen', tag=('q', c))
        w1_dma(0, c, ('w', 0, c))
    g.srd(sH, 26, 27, 64 * 112 * 1024, add=H_OFF)
    g.srd(sFL, 26, 27, 128 * 128, add=FLAG_OFF)
    g.srd(sW2, 20, 21, 1792 * 896)
    g.srd(sOUT, 22, 23, 2048 * 896)
    g.srd(sYT, 26, 27, 448 * 4096, add=YT_OFF)
    a(f's_mov_b32 s{sK}, {f32(-LOG2E)}')
    a('s_mul_i32 s70, s28, 4224')
    a(f's_add_u32 s70, s70, {BNC}')
    a('v_lshrrev_b32 v12, 1, v11')
    a(f'v_mul_u32_u24 v{vBW}, {BSTR}, v12')
    a(f'v_lshl_add_u32 v{vBW}, v10, 5, v{vBW}')
    a('v_and_b32 v12, 1, v11')
    a(f'v_lshl_add_u32 v{vBW}, v12, 4, v{vBW}')
    a(f'v_add_u32 v{vBW}, s70, v{vBW}')
    a('v_and_b32 v6, 31, v0')
    a('v_lshrrev_b32 v7, 5, v0')
    a(f'v_lshlrev_b32 v{vBR}, 5, v6')
    a(f'v_lshl_add_u32 v{vBR}, v7, 4, v{vBR}')
    a(f'v_add_u32 v{vBR}, s70, v{vBR}')
    a('v_bfe_u32 v8, v0, 2, 2')
    a('v_bfe_u32 v9, v0, 4, 1')
    a('v_and_b32 v12, 3, v0')
    a(f'v_lshlrev_b32 v{vWRD}, 6, v8')
    a(f'v_lshl_add_u32 v{vWRD}, v9, 5, v{vWRD}')
    a(f'v_lshl_add_u32 v{vWRD}, v12, 3, v{vWRD}')
    a(f'v_lshl_add_u32 v{vT}, v7, 8, v{vWRD}')
    a(f'v_lshl_add_u32 v{vWRD}, v7, 9, v{vWRD}')
    a('v_and_b32 v8, 1, v8')
    a('v_cmp_eq_u32 vcc, v8, v9')
    a('v_mov_b32 v8, 0x3f803f80')
    for i in range(4):
        a(f'v_cndmask_b32 v{SEL+i}, 0, v8, vcc')
    for i in range(1, 4):
        a(f'v_mov_b32 v{CA+i}, 0')
        a(f'v_mov_b32 v{CB+i}, 0')
    SQA = (vSQ, vC2, vMF, vRSTD)
    for r in SQA:
        a(f'v_mov_b32 v{r}, 0')
    a(f'v_mov_b32 v8, v{vT}')
    vTR2 = 8
    vS, vHH = 6, 7

    def bounce_write(c):
        for gq in range(4):
            a(f'ds_write_b128 v{vBW}, {v(Q+16*c+4*gq,4)} offset:{gq*256}', tag=('bw', c))

    def q_read(c):
        for j in range(4):
            a(f'ds_read_b128 {v(Q+16*c+4*j,4)}, v{vBR} offset:{j*BSTR}', tag=('qf', c))

    def w_read(h, c, p):
        b = p & 1
        for t in range(2):
            for h2 in range(2):
                a(f'ds_read_b64_tr_b16 {v(WB+8*b+4*t+2*h2,2)}, v{vWRD} offset:{c*WSLOT+t*4096+p*1024+h2*256}', tag=('wf', h, c, p))

    fl = Fill(a)

    def kstep(h, c, p, budget):
        b = p & 1
        first = (c == 0 and p == 0)
        a.wait(lg=[('wf', h, c, p), ('qf', c)])
        for t in range(2):
            A = ACC + 16 * (2 * h + t)
            a(f'v_mfma_f32_32x32x16_bf16 {v(A,16)}, {v(WB+8*b+4*t,4)}, {v(Q+16*c+4*p,4)}, {"0" if first else v(A,16)}')
            fl.drain(budget)
        if h == 0:
            a(f'v_mfma_f32_16x16x32_bf16 {v(RS,4)}, {v(SEL,4)}, {v(Q+16*c+4*p,4)}, {"0" if first else v(RS,4)}')
        sk = g.lab('CS')
        a(f's_cmp_eq_u32 s28, {p}')
        a(f's_cbranch_scc0 {sk}')
        for t in range(2):
            a(f'v_mfma_f32_16x16x32_bf16 {v(CS[t],4)}, {v(SEL,4)}, {v(WB+8*b+4*t,4)}, {"0" if c == 0 else v(CS[t],4)}', cond=True)
        a.label(sk)

    a.wait(vm=[('q', 0), ('w', 0, 0)])
    g.stamp()
    bounce_write(0)
    a('s_barrier')
    q_read(0)
    w_read(0, 0, 0)
    for c in range(7):
        for p in range(3):
            w_read(0, c, p + 1)
            kstep(0, c, p, 0)
        for j in range(16):
            a(f'v_dot2_f32_bf16 v{SQA[j&3]}, v{Q+16*c+j}, v{Q+16*c+j}, v{SQA[j&3]}')
        if c < 6:
            a.wait(vm=[('q', c + 1), ('w', 0, c + 1)])
            bounce_write(c + 1)
            a.wait(lg=('wf', 0, c, 3))
            a('s_barrier')
            w1_dma(1, c, ('w', 1, c))
            q_read(c + 1)
            w_read(0, c + 1, 0)
        else:
            a.wait(vm=('w', 1, 0), lg=('wf', 0, c, 3))
            a('s_barrier')
            w1_dma(1, 6, ('w', 1, 6))
            w_read(1, 0, 0)
            a(f'v_mov_b32 v{vT}, 0')
            a(f'buffer_load_dword v9, v{vT}, {s(sDBG,4)}, 0 offen sc1', tag='nonce')
        kstep(0, c, 3, 0)
        if g.o.get('fine') == 1 and c in (0, 1, 3, 5):
            g.stamp()
    g.stamp()
    T = TMP + 8
    fl.add('v_cmp_gt_u32 vcc, 32, v0')
    fl.add(f'v_lshlrev_b32 v{T}, 4, v{vS}')
    fl.add(f's_lshl_b32 s70, s28, 2', 1)
    fl.add(f's_add_u32 s70, s70, {HI}', 1)
    fl.add(f'v_add_u32 v{T}, s70, v{T}')
    fl.add(f'v_add_f32 v{vSQ}, v{vSQ}, v{vC2}')
    fl.add(f'v_add_f32 v{vMF}, v{vMF}, v{vRSTD}')
    fl.add(f'v_add_f32 v{vSQ}, v{vSQ}, v{vMF}')
    fl.add(f'v_mov_b32 v{T+1}, v{vSQ}')
    fl.add(f'v_mul_f32 v{T+2}, {f32(1.0/448)}, v{RS}')
    fl.add(f'ds_write_b32 v{T}, v{CS[0]} offset:{CSUM01}', tag='cs01')
    fl.add(f'ds_write_b32 v{T}, v{CS[1]} offset:{CSUM01+512}', tag='cs01')
    pre = list(fl.q)
    fl.flush()
    fl.add(f'v_permlane32_swap_b32 v{vSQ}, v{T+1}')
    fl.add(f'v_cvt_pk_bf16_f32 v{T+3}, v{T+2}, v{T+2}')
    fl.add(f'v_add_f32 v{vSQ}, v{vSQ}, v{T+1}')
    fl.add(f'v_mul_f32 v{T+1}, v{T+2}, v{T+2}')
    fl.add(f'v_mov_b32 v{T+4}, {f32(1.0/448)}')
    fl.add(f'v_fma_f32 v{vSQ}, v{vSQ}, v{T+4}, -v{T+1}')
    fl.add(f'v_max_f32 v{vSQ}, 0, v{vSQ}')
    fl.add(f'v_cvt_pk_bf16_f32 v{vSQ}, v{vSQ}, v{vSQ}')
    fl.add(f'v_and_b32 v{vSQ}, 0xffff0000, v{vSQ}')
    fl.add(f'v_add_f32 v{vSQ}, {f32(1e-5)}, v{vSQ}')
    fl.add(f'v_cvt_pk_bf16_f32 v{vSQ}, v{vSQ}, v{vSQ}')
    fl.add(f'v_and_b32 v{vSQ}, 0xffff0000, v{vSQ}')
    fl.add(f'v_sqrt_f32 v{vSQ}, v{vSQ}', 8)
    fl.add(f'v_xor_b32 v{T+1}, 0x80008000, v{T+3}')
    fl.add(f'v_cndmask_b32 v{CB}, 0, v{T+1}, vcc')
    fl.add(f'v_cvt_pk_bf16_f32 v{vSQ}, v{vSQ}, v{vSQ}')
    fl.add(f'v_and_b32 v{vSQ}, 0xffff0000, v{vSQ}')
    fl.add(f'v_rcp_f32 v{T+5}, v{vSQ}', 8)
    fl.add(f'v_and_b32 v{T+4}, 0xffff0000, v{T+3}')
    fl.add(f's_lshl_b32 s70, s28, 8', 1)
    fl.add(f's_add_u32 s70, s70, {HI}', 1)
    fl.add(f'v_lshl_add_u32 v{T+1}, v{vS}, 3, s70')
    fl.add(f'v_mul_f32 v{vC2}, s{sK}, v{T+5}')
    fl.add(f'ds_write_b64 v{T+1}, {v(T+4,2)} offset:{STATS}', tag='st')
    for c in range(7):
        for p in range(3):
            w_read(1, c, p + 1)
            kstep(1, c, p, 20)
        if c == 0:
            fl.flush()
        if c < 6:
            a.wait(vm=('w', 1, c + 1), lg=[('wf', 1, c, 3), 'cs01', 'st'])
            a('s_barrier')
            w_read(1, c + 1, 0)
        if c == 0:
            a(f'v_lshlrev_b32 v{T}, 4, v{vS}')
            a(f'v_add_u32 v{T}, {HI}, v{T}')
            a(f'ds_read_b128 {v(TMP,4)}, v{T} offset:{CSUM01}', tag='cr')
            a(f'ds_read_b128 {v(TMP+4,4)}, v{T} offset:{CSUM01+512}', tag='cr')
            a('s_and_b32 s70, s28, 1')
            a(f's_lshl_b32 s71, s{sJX}, 1')
            a('s_add_u32 s70, s70, s71')
            a('s_mul_i32 s71, s70, 4224')
            a('s_lshr_b32 s72, s28, 1')
            a(f's_mul_i32 s72, s72, {2*BSTR}')
            a('s_add_u32 s71, s71, s72')
            a(f's_add_u32 s71, s71, {BNC}')
            a(f'v_lshlrev_b32 v{T+1}, 5, v{vS}')
            a(f'v_lshl_add_u32 v{T+1}, v{vHH}, 3, v{T+1}')
            a(f'v_add_u32 v{T+1}, s71, v{T+1}')
            for gq in range(4):
                a(f'ds_read_b64 {v(QE+2*gq,2)}, v{T+1} offset:{(gq>>1)*BSTR+(gq&1)*16}', tag='qe')
            a('s_lshl_b32 s70, s70, 8')
            a(f's_add_u32 s70, s70, {HI}')
            a(f'v_lshl_add_u32 v{T+2}, v{vS}, 3, s70')
            a(f'ds_read_b64 {v(vMF,2)}, v{T+2} offset:{STATS}', tag='qe')
            fl.add(None, 0, wait=dict(lg='cr'))
            corr_tile(fl, 0, TMP)
            corr_tile(fl, 1, TMP + 4)
            epilogue_tile(fl, 0, sHB[0])
            epilogue_tile(fl, 1, sHB[0])
        kstep(1, c, 3, 20)
        if g.o.get('fine') == 2 and c in (0, 1, 3, 5):
            g.stamp()
    g.stamp()
    fl.flush()
    a(f'v_lshlrev_b32 v{T}, 4, v{vS}')
    a(f'v_add_u32 v{T}, {HI}, v{T}')
    a('s_lshl_b32 s70, s28, 2')
    a(f'v_add_u32 v{T+1}, s70, v{T}')
    a(f'ds_write_b32 v{T+1}, v{CS[0]} offset:{CSUM23}')
    a(f'ds_write_b32 v{T+1}, v{CS[1]} offset:{CSUM23+512}')
    a('v_lshrrev_b32 v1, 2, v0')
    a('v_and_b32 v2, 3, v0')
    a(f'v_mul_u32_u24 v{vDMA}, 896, v1')
    a(f'v_lshl_add_u32 v{vDMA}, v2, 4, v{vDMA}')
    a(f'v_lshlrev_b32 v3, 12, v1')
    a(f'v_lshl_add_u32 v3, v2, 4, v3')
    vYO = 3
    a(f's_mul_i32 s{sM0}, s28, {REG2}')
    a(f'v_add_u32 v{vTR2}, s{sM0}, v{vTR2}')
    a('s_mul_i32 s70, s28, 14336')
    a(f's_lshl_b32 s71, s{sCT}, 7')
    a('s_add_u32 s70, s70, s71')
    a('s_lshr_b32 s71, s28, 1')
    a('s_lshl_b32 s71, s71, 6')
    a(f's_add_u32 s{sW2B[0]}, s70, s71')
    a('s_xor_b32 s71, s71, 64')
    a(f's_add_u32 s{sW2B[1]}, s70, s71')
    a.wait_lg0()
    a('s_barrier')
    a(f'ds_read_b128 {v(TMP,4)}, v{T} offset:{CSUM23}', tag='cr')
    a(f'ds_read_b128 {v(TMP+4,4)}, v{T} offset:{CSUM23+512}', tag='cr')

    def kn(n):
        half, cb = divmod(n, 14)
        return 8 * cb + 4 * half

    def w2_dma(n, slot):
        a(f's_add_u32 m0, s{sM0}, {slot*2048}')
        a(f's_add_u32 s70, s{sW2B[0]}, {kn(n)*14336}')
        a(f'buffer_load_dwordx4 v{vDMA}, {s(sW2,4)}, s70 offen lds', tag=('w2', n))
        a(f's_add_u32 m0, s{sM0}, {slot*2048+1024}')
        a(f's_add_u32 s70, s{sW2B[1]}, {kn(n)*14336}')
        a(f'buffer_load_dwordx4 v{vDMA}, {s(sW2,4)}, s70 offen lds', tag=('w2', n))

    def w2_read(n, slot, dst):
        for t in range(2):
            for h2 in range(2):
                a(f'ds_read_b64_tr_b16 {v(dst+4*t+2*h2,2)}, v{vTR2} offset:{slot*2048+t*1024+h2*512}', tag=('w2f', n))

    NRES0, NRES = 9, 11
    def resreg(n):
        k = n - NRES0
        return 80 + 8 * k if k < 6 else 192 + 8 * (k - 6)
    for k in range(9):
        w2_dma(NRES0 + k, k)
    a.wait(lg='cr')
    corr_tile(fl, 2, TMP)
    corr_tile(fl, 3, TMP + 4)
    fl.flush()
    g.nonce_check(9, vT, sDBG, 'nonce', sTAG, sCNT)
    a(f'v_mov_b32 v9, s{sTAG}')
    vTAG = 9
    epilogue_tile(fl, 2, sHB[0])
    fl.flush()
    a(f's_lshl_b32 s70, s{sR}, 1')
    a('s_lshr_b32 s71, s28, 1')
    a('s_add_u32 s70, s70, s71')
    a('s_lshl_b32 s70, s70, 8')
    a(f's_lshl_b32 s71, s{sCB}, 3')
    a('s_add_u32 s70, s70, s71')
    a('s_and_b32 s71, s28, 1')
    a('s_lshl_b32 s71, s71, 2')
    a('s_add_u32 s70, s70, s71')
    a('s_add_u32 s73, s70, 64*128')
    a.wait(vm=('hst', 0))
    a(f'buffer_store_dword v{vTAG}, v{vFLG}, {s(sFL,4)}, s73 offen sc1')
    epilogue_tile(fl, 3, sHB[0])
    fl.flush()
    g.stamp()
    a('v_and_b32 v1, 31, v0')
    a('v_lshlrev_b32 v1, 2, v1')
    vFO = 1
    a(f's_lshl_b32 s72, s{sRB64}, 8')
    a('s_add_u32 s72, s72, 64*128')
    a(f's_lshl_b32 s70, s{sRB64}, 1')
    a('s_and_b32 s71, s28, 1')
    a('s_add_u32 s70, s70, s71')
    a('s_mul_i32 s70, s70, 112')
    a('s_add_u32 s70, s70, s28')
    a(f's_lshl_b32 s{sHB[0]}, s70, 10')
    a(f's_lshl_b32 s70, s{sRB64}, 1')
    a('s_xor_b32 s71, s71, 1')
    a('s_add_u32 s70, s70, s71')
    a('s_mul_i32 s70, s70, 112')
    a('s_add_u32 s70, s70, s28')
    a(f's_lshl_b32 s{sHB[1]}, s70, 10')
    order = [(18, 0), (19, 1)] + [(k, k) for k in range(2, 9)]
    for k in range(9):
        a.wait(vm=('w2', NRES0 + k))
        w2_read(NRES0 + k, k, resreg(NRES0 + k))
        if k >= 1:
            a.wait(lg=('w2f', NRES0 + k - 1))
            w2_dma(*order[k - 1])
    a.wait(lg=('w2f', NRES0 + 8))
    w2_dma(*order[8])
    a.wait(vm=('hst', 1))
    a(f'buffer_store_dword v{vTAG}, v{vFLG}, {s(sFL,4)}, s73 offen offset:128 sc1')
    g.poll_issue(2, vFO, sFL, 's72', 'pf0')
    for n, slot in ((18, 0), (19, 1)):
        a.wait(vm=('w2', n))
        w2_read(n, slot, resreg(n))
    a.wait(lg=('w2f', 18))
    w2_dma(0, 0)
    a.wait(lg=('w2f', 19))
    w2_dma(1, 1)
    if not g.o.get('fine'):
        g.stamp()
    g.poll_check(2, vFO, sFL, 's72', 'pf0', sTAG, '0x0fffffff', sCNT)
    if not g.o.get('fine'):
        g.stamp()
    HR, HD = 16, 8
    ACC2 = 128
    W2T = 232

    def h_load(n):
        for b in range(2):
            a(f's_add_u32 s70, s{sHB[b]}, {kn(n)*1024}')
            a(f'buffer_load_dwordx4 {v(HR+8*(n%HD)+4*b,4)}, v{vL16}, {s(sH,4)}, s70 offen sc1', tag=('h', n))

    def slot_of(n):
        return n if n < 9 else n - 20
    for n in range(HD):
        h_load(n)
    a('s_add_u32 s72, s72, 128')
    g.poll_issue(2, vFO, sFL, 's72', 'pf1')
    a(f's_lshl_b32 s70, s{sCT}, 1')
    a('s_lshr_b32 s71, s28, 1')
    a('s_add_u32 s70, s70, s71')
    a('s_lshl_b32 s74, s70, 17')
    a('s_lshl_b32 s70, s70, 1')
    a(f's_lshr_b32 s71, s{sRB64}, 4')
    a('s_add_u32 s70, s70, s71')
    a('s_add_u32 s70, s70, 32')
    a('s_lshl_b32 s73, s70, 7')
    a(f's_lshl_b32 s70, s{sRB64}, 7')
    a('s_add_u32 s74, s74, s70')
    a('s_and_b32 s71, s28, 1')
    a('s_lshl_b32 s71, s71, 6')
    a('s_add_u32 s74, s74, s71')
    a.wait(vm=('w2', 0))
    w2_read(0, 0, W2T)
    ZL, ZT, XT = 80, 88, 96
    for n in range(28):
        inlds = lambda m: m < 9 or m >= 20
        if n + 1 < 28 and inlds(n + 1):
            a.wait(vm=('w2', n + 1))
            w2_read(n + 1, slot_of(n + 1), W2T + 8 * ((n + 1) & 1))
        Areg = (W2T + 8 * (n & 1)) if inlds(n) else resreg(n)
        a.wait(vm=('h', n), lg=('w2f', n))
        B = HR + 8 * (n % HD)
        for t in range(2):
            for b in range(2):
                D = ACC2 + 16 * (2 * t + b)
                a(f'v_mfma_f32_32x32x16_bf16 {v(D,16)}, {v(Areg+4*t,4)}, {v(B+4*b,4)}, {"0" if n == 0 else v(D,16)}')
                fl.drain(20)
        if n + HD == 14:
            g.poll_check(2, vFO, sFL, 's72', 'pf1', sTAG, '0x0fffffff', sCNT)
        if n + HD < 28:
            h_load(n + HD)
        if n < 8:
            w2_dma(20 + n, n)
        if n == 15:
            g.poll_issue(2, vFO, sFL, 's73', 'py')
        if n == 19:
            g.poll_check(2, vFO, sFL, 's73', 'py', sTAG, '-1', sCNT)
            a(f'buffer_load_dwordx4 {v(ZL,4)}, v{vYO}, {s(sYT,4)}, s74 offen sc1', tag='z')
            a('s_add_u32 s74, s74, 16*4096')
            a(f'buffer_load_dwordx4 {v(ZL+4,4)}, v{vYO}, {s(sYT,4)}, s74 offen sc1', tag='z')
            a(f'v_add_u32 v2, s{sM0}, v{vL16}')
            for k in range(8):
                fl.add(f'v_lshlrev_b32 v{XT+2*k}, 16, v{QE+k}')
                fl.add(f'v_and_b32 v{XT+2*k+1}, 0xffff0000, v{QE+k}')
            for k in range(16):
                fl.add(f'v_sub_f32 v{XT+16+k}, v{XT+k}, v{vMF}')
            for k in range(16):
                fl.add(f'v_mul_f32 v{XT+16+k}, v{XT+16+k}, v{vRSTD}')
        if n == 23:
            fl.flush()
            a.wait(vm='z')
            a(f'ds_write_b128 v2, {v(ZL,4)} offset:{ZSLOT}')
            a(f'ds_write_b128 v2, {v(ZL+4,4)} offset:{ZSLOT+1024}')
            for gq in range(4):
                a(f'ds_read_b64_tr_b16 {v(ZT+2*gq,2)}, v{vTR2} offset:{ZSLOT+512*gq}', tag='zt')
            fl.add(None, 0, wait=dict(lg='zt'))
            for k in range(8):
                fl.add(f'v_lshlrev_b32 v{ZL+(2*k)%8}, 16, v{ZT+k}')
                fl.add(f'v_and_b32 v{ZL+(2*k+1)%8}, 0xffff0000, v{ZT+k}')
                fl.add(f'v_fmac_f32 v{XT+2*k}, v{XT+16+2*k}, v{ZL+(2*k)%8}')
                fl.add(f'v_fmac_f32 v{XT+2*k+1}, v{XT+16+2*k+1}, v{ZL+(2*k+1)%8}')
            for k in range(8):
                fl.add(f'v_cvt_pk_bf16_f32 v{ZT+k}, v{XT+2*k}, v{XT+2*k+1}')
            for k in range(8):
                fl.add(f'v_lshlrev_b32 v{XT+2*k}, 16, v{ZT+k}')
                fl.add(f'v_and_b32 v{XT+2*k+1}, 0xffff0000, v{ZT+k}')
    fl.flush()
    if not g.o.get('fine'):
        g.stamp()
    for q in range(1, 4):
        for k in range(4):
            a(f'ds_write_b128 v2, {v(ACC2+16*q+4*k,4)} offset:{(q-1)*4096+k*1024}')
    for q in range(1, 4):
        a(f's_xor_b32 s70, s28, {q}')
        a(f's_mul_i32 s70, s70, {REG2}')
        a(f'v_add_u32 v{10+q}, s70, v{vL16}')
    a(f'v_mul_u32_u24 v1, 896, v{vS}')
    a(f'v_lshl_add_u32 v1, v{vHH}, 4, v1')
    a(f's_lshl_b32 s70, s{sRB64}, 1')
    a('s_and_b32 s71, s28, 1')
    a('s_add_u32 s70, s70, s71')
    a('s_mul_i32 s70, s70, 32*896')
    a(f's_lshl_b32 s71, s{sCT}, 7')
    a('s_add_u32 s70, s70, s71')
    a('s_lshr_b32 s71, s28, 1')
    a('s_lshl_b32 s71, s71, 6')
    a('s_add_u32 s70, s70, s71')
    a.wait_lg0()
    a('s_barrier')
    for k in range(4):
        for q in range(1, 4):
            a(f'ds_read_b128 {v(16+16*(q-1)+4*k,4)}, v{10+q} offset:{(q-1)*4096+k*1024}', tag=('r', k))
    for k in range(4):
        a.wait(lg=('r', k))
        for i in range(4):
            a(f'v_add_f32 v{ACC2+4*k+i}, v{ACC2+4*k+i}, v{16+4*k+i}')
            a(f'v_add_f32 v{32+4*k+i}, v{32+4*k+i}, v{48+4*k+i}')
        for i in range(4):
            a(f'v_add_f32 v{ACC2+4*k+i}, v{ACC2+4*k+i}, v{32+4*k+i}')
        for i in range(4):
            a(f'v_add_f32 v{ACC2+4*k+i}, v{ACC2+4*k+i}, v{XT+4*k+i}')
        a(f'v_cvt_pk_bf16_f32 v{64+2*k}, v{ACC2+4*k}, v{ACC2+4*k+1}')
        a(f'v_cvt_pk_bf16_f32 v{64+2*k+1}, v{ACC2+4*k+2}, v{ACC2+4*k+3}')
        if k & 1:
            b = 64 + 2 * (k - 1)
            a(f'v_permlane32_swap_b32 v{b}, v{b+2}')
            a(f'v_permlane32_swap_b32 v{b+1}, v{b+3}')
            a(f'buffer_store_dwordx4 {v(b,4)}, v1, {s(sOUT,4)}, s70 offen offset:{16*(k-1)}')
    g.stamp()
    g.dump_stamps(40, 42)
```

```python
import sys
from asmlib import Asm, v, s

NAME = 'parallel_sum__ssm_conv_h3__dense_activation_silu__prompt'
KVT_OFF, YT_OFF, H_OFF, FLAG_OFF, DIAG_OFF = 0, 0x200000, 0x400000, 0xC00000, 0xD00000
NF, NP, NC = 224, 32, 224
GRID = NF + NP + NC
LDS = 81920
SPIN_MAX = 1 << 15
LOG2E = 1.4426950408889634

import struct
def f32(x):
    return '0x%08x' % struct.unpack('<I', struct.pack('<f', x))[0]


class G:
    def __init__(self, diag=False, opts=None):
        self.a = Asm()
        self.diag = diag
        self.o = opts or {}
        self.nlab = 0
        self.nstamp = 0

    def lab(self, p='L'):
        self.nlab += 1
        return f'{p}_{self.nlab}'

    def srd(self, d, lo, hi, nrec, add=None):
        a = self.a
        if add is None:
            a(f's_mov_b32 s{d}, s{lo}')
            a(f's_mov_b32 s{d+1}, s{hi}')
        else:
            a(f's_add_u32 s{d}, s{lo}, {add}')
            a(f's_addc_u32 s{d+1}, s{hi}, 0')
        a(f's_mov_b32 s{d+2}, {nrec}')
        a(f's_mov_b32 s{d+3}, 0x20000')

    def stamp(self):
        if not self.diag:
            return
        a = self.a
        k = self.nstamp
        self.nstamp += 1
        assert k < 10
        a('s_memtime s[78:79]' if self.o.get('cyc') else 's_memrealtime s[78:79]')
        a.wait_lg0()
        a(f's_mov_b32 s{80+k}, s78')

    def dump_stamps(self, vt, vo):
        if not self.diag:
            return
        a = self.a
        self.srd(72, 26, 27, 0x100000, add=DIAG_OFF)
        a(f'v_mov_b32 v{vt}, 0')
        for k in range(self.nstamp):
            a(f'v_writelane_b32 v{vt}, s{80+k}, {k}')
        a('s_lshl_b32 s76, s2, 2')
        a('s_add_u32 s76, s76, s28')
        a('s_lshl_b32 s76, s76, 6')
        a(f'v_mbcnt_lo_u32_b32 v{vo}, -1, 0')
        a(f'v_mbcnt_hi_u32_b32 v{vo}, -1, v{vo}')
        a(f'v_cmp_gt_u32 vcc, 16, v{vo}')
        a(f'v_lshlrev_b32 v{vo}, 2, v{vo}')
        a(f'v_mov_b32 v{vt+1}, 0x7fffffff')
        a(f'v_cndmask_b32 v{vo}, v{vt+1}, v{vo}, vcc')
        a(f'buffer_store_dword v{vt}, v{vo}, s[72:75], s76 offen')
        self.nstamp = 0

    def poll_issue(self, vdst, voff, srd, soff, tag):
        self.a(f'buffer_load_dword v{vdst}, v{voff}, {s(srd,4)}, {soff} offen sc1', tag=tag)

    def poll_check(self, vdst, voff, srd, soff, tag, stag, mask, scnt):
        a = self.a
        ok, lp = self.lab('POK'), self.lab('PLP')
        a.wait(vm=tag)
        if (self.o.get('noC') or self.o.get('onlyP')) and tag == 'py':
            return
        a(f's_movk_i32 s{scnt}, {SPIN_MAX-1}')
        a.label(lp)
        a(f'v_cmp_eq_u32 vcc, s{stag}, v{vdst}')
        a('s_nop 1')
        a(f's_and_b32 vcc_lo, vcc_lo, {mask}')
        a(f's_cmp_eq_u32 vcc_lo, {mask}')
        a(f's_cbranch_scc1 {ok}')
        a(f's_sub_u32 s{scnt}, s{scnt}, 1', cond=True)
        a(f's_cbranch_scc1 {ok}', cond=True)
        a('s_sleep 2', cond=True)
        a.raw(f'    buffer_load_dword v{vdst}, v{voff}, {s(srd,4)}, {soff} offen sc1')
        a.raw('    s_waitcnt vmcnt(0)')
        a.raw(f'    s_branch {lp}')
        a.label(ok)

    def nonce_check(self, vdst, vzero, srd, tag, stag, scnt):
        a = self.a
        ok, lp = self.lab('NOK'), self.lab('NLP')
        a.wait(vm=tag)
        a(f's_movk_i32 s{scnt}, {SPIN_MAX-1}')
        a.label(lp)
        a(f'v_readfirstlane_b32 s{stag}, v{vdst}')
        a('s_nop 1')
        a(f's_cmp_lg_u32 s{stag}, 0')
        a(f's_cbranch_scc1 {ok}')
        a(f's_sub_u32 s{scnt}, s{scnt}, 1', cond=True)
        a(f's_cbranch_scc1 {ok}', cond=True)
        a('s_sleep 2', cond=True)
        a.raw(f'    buffer_load_dword v{vdst}, v{vzero}, {s(srd,4)}, 0 offen sc1')
        a.raw('    s_waitcnt vmcnt(0)')
        a.raw(f'    s_branch {lp}')
        a.label(ok)

    def build(self):
        a = self.a
        a.label(f'{NAME}_kernel')
        a(f's_cmp_ge_u32 s2, {GRID}')
        a('s_cbranch_scc1 L_END')
        a('s_load_dwordx16 s[4:19], s[0:1], 0')
        a('s_load_dwordx8 s[20:27], s[0:1], 64')
        a('v_lshrrev_b32 v1, 6, v0')
        a('v_and_b32 v0, 63, v0')
        a('v_readfirstlane_b32 s28, v1')
        a('s_cmp_lt_u32 s2, 16')
        a('s_cbranch_scc0 L_NOPF')
        a('s_getpc_b64 s[30:31]', cond=True)
        a('s_lshr_b32 s29, s2, 3', cond=True)
        a('s_lshl_b32 s29, s29, 2', cond=True)
        a('s_add_u32 s29, s29, s28', cond=True)
        a('s_lshl_b32 s29, s29, 13', cond=True)
        a('v_lshlrev_b32 v2, 7, v0', cond=True)
        a('v_add_u32 v2, s29, v2', cond=True)
        a('s_mov_b32 s29, L_CODE_END-L_PCREF', cond=True)
        a('v_min_u32 v2, s29, v2', cond=True)
        a.label('L_PCREF')
        a.raw('    global_load_dword v255, v2, s[30:31]')
        a.label('L_NOPF')
        a(f's_cmp_lt_u32 s2, {NF}')
        a('s_cbranch_scc1 L_F')
        if self.o.get('noC'):
            a('s_endpgm')
        a(f's_cmp_lt_u32 s2, {NF+NP}')
        a('s_cbranch_scc1 L_P')
        if self.o.get('onlyP'):
            a('s_endpgm')
        self.role_c()
        a('s_endpgm')
        a.raw('.p2align 6')
        a.label('L_P')
        a.vm, a.lg = [], []
        self.role_p()
        a('s_endpgm')
        a.raw('.p2align 6')
        a.label('L_F')
        a.vm, a.lg = [], []
        self.role_f()
        a.label('L_END')
        a('s_endpgm')
        a.label('L_CODE_END')
        return self.wrap(a.render())

    def wrap(self, body):
        hdr = f'''; Fused H3 (shift conv * v -> long causal conv -> gate) + SiLU FFN + residual, one launch.
; generated by gen/gen.py
; @launch grid=({GRID},1,1) block=(256,1,1) lds={LDS}
.amdgcn_target "amdgcn-amd-amdhsa--gfx950"
.text
.globl {NAME}_kernel
.p2align 8
.type {NAME}_kernel,@function
'''
        ftr = f'''.section .rodata,"a"
.p2align 6
.amdhsa_kernel {NAME}_kernel
  .amdhsa_next_free_vgpr 256
  .amdhsa_next_free_sgpr 102
  .amdhsa_accum_offset 256
  .amdhsa_group_segment_fixed_size 0
  .amdhsa_kernarg_size 96
  .amdhsa_user_sgpr_count 2
  .amdhsa_user_sgpr_kernarg_segment_ptr 1
  .amdhsa_system_sgpr_workgroup_id_x 1
  .amdhsa_float_denorm_mode_32 3
.end_amdhsa_kernel
'''
        return hdr + body + ftr

    def role_p(self):
        a = self.a
        a('s_waitcnt lgkmcnt(0)')
        self.stamp()
        self.srd(32, 18, 19, 448 * 3584)
        self.srd(36, 20, 21, 1792 * 896)
        a(f's_sub_u32 s29, s2, {NF}')
        a('s_lshr_b32 s29, s29, 3')
        a('s_lshl_b32 s29, s29, 2')
        a('s_add_u32 s29, s29, s28')
        a('s_and_b32 s30, s2, 1')
        a('s_mul_i32 s31, s29, 196')
        a('s_mul_i32 s40, s30, 1792')
        a('s_add_u32 s40, s40, 128')
        a('s_movk_i32 s41, 9363')
        a('s_movk_i32 s42, 3584-7*256')
        for j in range(4):
            a(f'v_add_u32 v1, {64*j}, v0')
            if j == 3:
                a('v_min_u32 v1, 195, v1')
            a('v_add_u32 v1, s31, v1')
            a('v_mul_u32_u24 v2, s41, v1')
            a('v_lshrrev_b32 v2, 16, v2')
            a('v_mul_u32_u24 v2, s42, v2')
            a('v_lshl_add_u32 v2, v1, 8, v2')
            a(f'buffer_load_dword v{10+j}, v2, s[32:35], s40 offen')
        a('s_mul_i32 s31, s29, 784*128')
        a('v_lshlrev_b32 v1, 7, v0')
        for j in range(13):
            if j == 12:
                a('v_min_u32 v1, 15*128, v1')
            a(f'buffer_load_dword v{20+j}, v1, s[36:39], s31 offen')
            if j < 12:
                a('s_add_u32 s31, s31, 8192')
        a.wait_vm0()
        self.stamp()
        self.dump_stamps(40, 42)

    def role_c(self):
        a = self.a
        CH_STRIDE = 18176
        H0, H1, X0, X1 = 0, 4480, 8960, 13536
        RED = 36352
        KIMG = 52736
        VIMG = KIMG + 9216
        BNC = VIMG + 8192
        a(f's_sub_u32 s29, s2, {NF+NP}')
        a('s_mul_i32 s30, s29, 9363')
        a('s_lshr_b32 s30, s30, 16')
        a('s_mul_i32 s31, s30, 7')
        a('s_sub_u32 s31, s29, s31')
        a('s_lshr_b32 s58, s28, 1')
        a('s_and_b32 s57, s28, 1')
        a('s_lshl_b32 s56, s29, 1')
        a('s_add_u32 s56, s56, s58')
        a('v_lshrrev_b32 v1, 3, v0')
        a('v_and_b32 v2, 7, v0')
        a('v_mul_u32_u24 v3, 896, v1')
        a('v_lshl_add_u32 v3, v2, 4, v3')
        a('v_lshlrev_b32 v4, 4, v0')
        a('v_and_b32 v5, 15, v0')
        a('v_lshrrev_b32 v6, 4, v0')
        a('s_waitcnt lgkmcnt(0)')
        self.stamp()
        self.srd(32, 6, 7, 2048 * 896)
        self.srd(36, 8, 9, 2048 * 896)
        a('s_mul_i32 s59, s30, 64*896')
        a('s_lshl_b32 s60, s31, 7')
        a('s_add_u32 s59, s59, s60')
        lh = self.lab('NOHALO')
        a('s_cmp_eq_u32 s28, 0')
        a(f's_cbranch_scc0 {lh}')
        a('s_sub_u32 s60, s59, 8*896', cond=True)
        a('s_cmp_eq_u32 s30, 0', cond=True)
        a('s_cselect_b32 s60, 0x7ff00000, s60', cond=True)
        a(f's_mov_b32 m0, {KIMG}', cond=True)
        a('v_add_u32 v7, s60, v3', cond=True)
        a.raw('    buffer_load_dwordx4 v7, s[32:35], 0 offen lds')
        a.label(lh)
        a('s_mul_i32 s60, s28, 16*896')
        a('s_add_u32 s60, s60, s59')
        a('s_lshl_b32 s61, s28, 11')
        a(f's_add_u32 s62, s61, {KIMG+1024}')
        a('s_mov_b32 m0, s62')
        a('s_add_u32 s63, s60, 8*896')
        a('buffer_load_dwordx4 v3, s[32:35], s60 offen lds', tag='kv')
        a('s_add_u32 m0, s62, 1024')
        a(f's_add_u32 s62, s61, {VIMG}')
        a('buffer_load_dwordx4 v3, s[32:35], s63 offen lds', tag='kv')
        a('s_mov_b32 m0, s62')
        a('s_nop 0')
        a('buffer_load_dwordx4 v3, s[36:39], s60 offen lds', tag='kv')
        a('s_add_u32 m0, s62, 1024')
        self.srd(40, 10, 11, 448 * 8)
        a('buffer_load_dwordx4 v3, s[36:39], s63 offen lds', tag='kv')
        a('s_lshl_b32 s60, s31, 9')
        a('s_lshl_b32 s61, s28, 7')
        a('s_add_u32 s60, s60, s61')
        a('v_lshlrev_b32 v7, 3, v5')
        a('buffer_load_dwordx2 v[8:9], v7, s[40:43], s60 offen', tag='kv')
        a('s_lshl_b32 s60, s56, 12')
        self.srd(44, 12, 13, 4096, add='s60')
        a('s_mul_i32 s61, s58, %d' % CH_STRIDE)
        a('s_mul_i32 s62, s57, %d' % H1)
        a('s_add_u32 s62, s62, s61')
        a('s_lshl_b32 s63, s57, 2')
        a('s_sub_u32 s63, 60, s63')
        a('v_lshlrev_b32 v10, 2, v0')
        a('v_subrev_u32 v10, s63, v10')
        a('s_sub_u32 s63, 256, s63')
        a('v_add_u32 v11, s63, v4')
        a('s_mov_b32 m0, s62')
        a('s_nop 0')
        a('buffer_load_dword v10, s[44:47], 0 offen lds', tag='h')
        a('s_add_u32 m0, s62, 256')
        a('s_nop 0')
        for n in range(4):
            a(f'buffer_load_dwordx4 v11, s[44:47], 0 offen offset:{1024*n} lds', tag='h')
        self.srd(48, 14, 15, 896)
        a('s_lshl_b32 s60, s56, 1')
        a('v_mov_b32 v12, 0')
        a('buffer_load_ushort v13, v12, s[48:51], s60 offen', tag='h')
        a('s_mul_i32 s62, s57, %d' % (X1 - X0))
        a('s_add_u32 s62, s62, s61')
        a('v_min_u32 v14, 27*16, v4')
        a('v_add_u32 v14, s62, v14')
        for j in range(4):
            a(f'v_mov_b32 v{16+j}, 0')
        a(f'ds_write_b128 v14, v[16:19] offset:{X0+4096}')
        a('v_lshrrev_b32 v14, 2, v5')
        a('v_lshl_add_u32 v14, v6, 4, v14')
        a('v_lshlrev_b32 v14, 7, v14')
        a('v_and_b32 v15, 3, v5')
        a('v_lshl_add_u32 v14, v15, 3, v14')
        a('s_lshl_b32 s60, s28, 5')
        a('v_add_u32 v14, s60, v14')
        self.srd(52, 26, 27, 448 * 4096, add=None)
        self.srd(64, 26, 27, 128 * 128, add=FLAG_OFF)
        self.srd(68, 24, 25, 256)
        a.wait(vm='kv')
        a('s_barrier')
        self.stamp()
        a('buffer_load_dword v15, v12, s[68:71], 0 offen sc1', tag='nonce')
        KR, VR = 20, 30
        for m in range(5):
            a(f'ds_read_b64_tr_b16 {v(KR+2*m,2)}, v14 offset:{KIMG+(4+4*m)*128}', tag='k')
        for m in range(4):
            a(f'ds_read_b64_tr_b16 {v(VR+2*m,2)}, v14 offset:{VIMG+4*m*128}', tag='v')
        a('v_lshlrev_b32 v40, 16, v8')
        a('v_and_b32 v41, 0xffff0000, v8')
        a('v_lshlrev_b32 v42, 16, v9')
        a('v_and_b32 v43, 0xffff0000, v9')
        KF, VF, OF = 44, 64, 80
        a.wait(lg='k')
        for n in range(1, 20):
            if n & 1:
                a(f'v_and_b32 v{KF+n}, 0xffff0000, v{KR+n//2}')
            else:
                a(f'v_lshlrev_b32 v{KF+n}, 16, v{KR+n//2}')
        for o in range(16):
            a(f'v_mul_f32 v{OF+o}, v43, v{KF+o+1}')
        for j in (2, 1, 0):
            for o in range(16):
                a(f'v_fmac_f32 v{OF+o}, v{40+j}, v{KF+o+4-j}')
        a.wait(lg='v')
        for n in range(16):
            if n & 1:
                a(f'v_and_b32 v{VF+n}, 0xffff0000, v{VR+n//2}')
            else:
                a(f'v_lshlrev_b32 v{VF+n}, 16, v{VR+n//2}')
        for o in range(16):
            a(f'v_mul_f32 v{OF+o}, v{OF+o}, v{VF+o}')
        PK = 20
        for n in range(8):
            a(f'v_cvt_pk_bf16_f32 v{PK+n}, v{OF+15-2*n}, v{OF+14-2*n}')
        a('s_mul_i32 s60, s28, 2304')
        a(f's_add_u32 s60, s60, {BNC}')
        a('v_mul_u32_u24 v40, 144, v5')
        a('v_sub_u32 v41, 3, v6')
        a('v_lshl_add_u32 v40, v41, 5, v40')
        a('v_add_u32 v40, s60, v40')
        a('v_mul_u32_u24 v41, 144, v1')
        a('v_lshl_add_u32 v41, v2, 4, v41')
        a('v_add_u32 v41, s60, v41')
        a(f'ds_write_b128 v40, {v(PK,4)}')
        a(f'ds_write_b128 v40, {v(PK+4,4)} offset:16')
        a('ds_read_b128 v[44:47], v41', tag='b')
        a(f'ds_read_b128 v[48:51], v41 offset:{8*144}', tag='b')
        a('v_lshlrev_b32 v42, 12, v1')
        a('v_lshl_add_u32 v42, v2, 4, v42')
        a('s_lshl_b32 s60, s31, 18')
        a('s_lshl_b32 s62, s28, 16')
        a('s_add_u32 s60, s60, s62')
        a('s_add_u32 s60, s60, 3968')
        a('s_lshl_b32 s62, s30, 7')
        a('s_sub_u32 s60, s60, s62')
        a('s_add_u32 s62, s60, 8*4096')
        a.wait(lg='b')
        a('buffer_store_dwordx4 v[44:47], v42, s[52:55], s60 offen sc1', tag='st')
        a('buffer_store_dwordx4 v[48:51], v42, s[52:55], s62 offen sc1', tag='st')
        a('v_cmp_eq_u32 vcc, 0, v0')
        a('v_mov_b32 v43, 0x7fffffff')
        a('v_cndmask_b32 v43, v43, v12, vcc')
        self.nonce_check(15, 12, 68, 'nonce', 77, 60)
        a('v_mov_b32 v15, s77')
        a('s_lshl_b32 s60, s31, 2')
        a('s_add_u32 s60, s60, s28')
        a('s_lshl_b32 s60, s60, 7')
        a('s_lshl_b32 s62, s30, 2')
        a('s_add_u32 s60, s60, s62')
        a.wait(vm='st')
        a('buffer_store_dword v15, v43, s[64:67], s60 offen sc1', tag='fl')
        self.stamp()
        a('v_and_b32 v16, 31, v0')
        a('v_lshlrev_b32 v16, 2, v16')
        a('s_lshr_b32 s59, s56, 4')
        a('s_lshl_b32 s59, s59, 7')
        self.poll_issue(17, 16, 64, 's59', 'pf')
        a('s_lshl_b32 s60, s56, 12')
        self.srd(52, 26, 27, 4096, add='s60')
        a('s_lshl_b32 s62, s57, 11')
        a('v_add_u32 v19, s62, v4')
        self.poll_check(17, 16, 64, 's59', 'pf', 77, '-1', 60)
        self.stamp()
        for n in range(2):
            a(f'buffer_load_dwordx4 {v(20+8*n,4)}, v19, s[52:55], 0 offen offset:{1024*n} sc1', tag=f'x{n}')
            a(f'buffer_load_dwordx4 {v(24+8*n,4)}, v19, s[52:55], 0 offen offset:{1024*n+4} sc1', tag=f'x{n}')
        a('v_add_u32 v18, s61, v19')
        a('v_and_b32 v36, 1, v5')
        a('v_lshrrev_b32 v37, 1, v5')
        a('s_lshl_b32 s62, s57, 8')
        a('s_add_u32 s62, s62, s61')
        a(f'v_mul_u32_u24 v38, {X1-X0}, v36')
        a('v_lshlrev_b32 v39, 6, v37')
        a('v_sub_u32 v38, v38, v39')
        a('v_lshl_add_u32 v38, v6, 4, v38')
        a(f'v_add_u32 v38, {X0+448}, v38')
        a('v_add_u32 v38, s62, v38')
        a(f'v_mul_u32_u24 v39, {H1-H0}, v36')
        a('v_lshl_add_u32 v39, v37, 3, v39')
        a('v_lshl_add_u32 v39, v6, 4, v39')
        a('v_add_u32 v39, s62, v39')
        for n in range(2):
            a.wait(vm=f'x{n}')
            A, B = 20 + 8 * n, 24 + 8 * n
            a(f'ds_write_b128 v18, {v(A,4)} offset:{X1+1024*n}')
            for j in range(4):
                a(f'v_alignbit_b32 v{44+4*n+j}, v{B+j}, v{A+j}, 16')
            a(f'ds_write_b128 v18, {v(44+4*n,4)} offset:{X0+1024*n}')
        a.wait_all()
        a('s_barrier')
        self.stamp()
        FB = [64, 128]
        GB = [96, 160]
        ACC = 192

        def loads(mi):
            b = mi & 1
            for j in range(8):
                a(f'ds_read_b128 {v(GB[b]+4*j,4)}, v38 offset:{64*mi+512*(7-j)}', tag=(mi, j))
                a(f'ds_read_b64 {v(FB[b]+4*j,2)}, v39 offset:{64*mi+512*j}', tag=(mi, j))
                a(f'ds_read_b64 {v(FB[b]+4*j+2,2)}, v39 offset:{64*mi+512*j+8}', tag=(mi, j))

        def loadlist(mi):
            b = mi & 1
            L = []
            for j in range(8):
                L.append((f'ds_read_b128 {v(GB[b]+4*j,4)}, v38 offset:{64*mi+512*(7-j)}', (mi, j)))
                L.append((f'ds_read_b64 {v(FB[b]+4*j,2)}, v39 offset:{64*mi+512*j}', (mi, j)))
                L.append((f'ds_read_b64 {v(FB[b]+4*j+2,2)}, v39 offset:{64*mi+512*j+8}', (mi, j)))
            return L
        loads(0)
        for mi in range(4):
            b = mi & 1
            nxt = loadlist(mi + 1) if mi < 3 else []
            pairs = sorted([(q, j) for q in range(8) for j in range(q + 1)], key=lambda t: (max(t[1], t[0] - t[1]), t[0]))
            seen = set()
            for k, (q, j) in enumerate(pairs):
                need = max(j, q - j)
                a.wait(lg=[(mi, need)])
                c = '0' if (mi == 0 and q not in seen) else v(ACC + 4 * q, 4)
                seen.add(q)
                a(f'v_mfma_f32_16x16x32_bf16 {v(ACC+4*q,4)}, {v(FB[b]+4*j,4)}, {v(GB[b]+4*(q-j),4)}, {c}')
                if k >= 8 and nxt:
                    t, tg = nxt.pop(0)
                    a(t, tag=tg)
            for t, tg in nxt:
                a(t, tag=tg)
        self.stamp()
        ls = self.lab('NOSWAP')
        a('s_nop 7')
        a('s_cmp_eq_u32 s57, 0')
        a(f's_cbranch_scc0 {ls}')
        for k in range(16):
            a(f'v_swap_b32 v{ACC+k}, v{ACC+16+k}', cond=True)
        a.label(ls)
        a('s_lshl_b32 s60, s28, 12')
        a(f's_add_u32 s60, s60, {RED}')
        a('v_add_u32 v20, s60, v4')
        a('s_xor_b32 s62, s60, 4096') if (RED % 8192 == 0) else None
        if RED % 8192:
            a('s_xor_b32 s62, s28, 1')
            a('s_lshl_b32 s62, s62, 12')
            a(f's_add_u32 s62, s62, {RED}')
        a('v_add_u32 v21, s62, v4')
        for t in range(4):
            a(f'ds_write_b128 v20, {v(ACC+4*t,4)} offset:{1024*t}')
        a(f'v_mul_u32_u24 v22, {X1-X0}, v36')
        a('v_lshlrev_b32 v23, 6, v37')
        a('v_sub_u32 v22, v22, v23')
        a('v_lshlrev_b32 v23, 4, v6')
        a('v_sub_u32 v22, v22, v23')
        a('s_lshl_b32 s62, s57, 11')
        a('s_sub_u32 s62, s61, s62')
        a(f's_add_u32 s62, s62, {X0+4080-3*512}')
        a('v_add_u32 v22, s62, v22')
        for t in range(4):
            a(f'ds_read_b128 {v(64+4*t,4)}, v22 offset:{512*(3-t)}', tag='xc')
        a('v_lshlrev_b32 v13, 16, v13')
        a('v_cmp_eq_u32 vcc, 1, v36')
        a('v_mov_b32 v24, 0x05040100')
        a('v_mov_b32 v25, 0x01000504')
        a('v_mov_b32 v26, 0x03020706')
        a('v_mov_b32 v27, 0x07060302')
        a('v_cndmask_b32 v24, v24, v25, vcc')
        a('v_cndmask_b32 v25, v27, v26, vcc')
        a.wait_lg0()
        a('s_barrier')
        for t in range(4):
            a(f'ds_read_b128 {v(80+4*t,4)}, v21 offset:{1024*t}', tag=('p', t))
        a('s_lshl_b32 s60, s28, 11')
        a(f's_add_u32 s60, s60, {KIMG}')
        a('v_lshlrev_b32 v28, 6, v37')
        a('v_lshl_add_u32 v28, v6, 4, v28')
        a('v_lshl_add_u32 v28, v36, 3, v28')
        a('v_add_u32 v28, s60, v28')
        a('v_add_u32 v29, s60, v4')
        for t in range(4):
            a.wait(lg=('p', t))
            K = ACC + 16 + 4 * t
            for j in range(4):
                a(f'v_add_f32 v{K+j}, v{K+j}, v{80+4*t+j}')
                a(f'v_lshlrev_b32 v{96+j}, 16, v{64+4*t+3-j}')
            for j in range(4):
                a(f'v_fmac_f32 v{K+j}, v13, v{96+j}')
            a(f'v_cvt_pk_bf16_f32 v100, v{K}, v{K+1}')
            a(f'v_cvt_pk_bf16_f32 v101, v{K+2}, v{K+3}')
            a('v_cndmask_b32 v102, v101, v100, vcc')
            a('v_cndmask_b32 v103, v100, v101, vcc')
            a('v_mov_b32_dpp v104, v102 quad_perm:[1,0,3,2] row_mask:0xf bank_mask:0xf')
            a(f'v_perm_b32 v{106+2*t}, v104, v103, v24')
            a(f'v_perm_b32 v{107+2*t}, v104, v103, v25')
            a(f'ds_write_b64 v28, {v(106+2*t,2)} offset:{512*t}')
        a('ds_read_b128 v[44:47], v29', tag='o')
        a('ds_read_b128 v[48:51], v29 offset:1024', tag='o')
        a('s_lshl_b32 s60, s56, 12')
        a(f's_add_u32 s60, s60, {YT_OFF}')
        self.srd(52, 26, 27, 4096, add='s60')
        a('s_lshl_b32 s60, s57, 11')
        a.wait(lg='o')
        a('buffer_store_dwordx4 v[44:47], v4, s[52:55], s60 offen sc1', tag='st')
        a('buffer_store_dwordx4 v[48:51], v4, s[52:55], s60 offen offset:1024 sc1', tag='st')
        a('s_lshr_b32 s60, s56, 5')
        a('s_lshl_b32 s60, s60, 1')
        a('s_add_u32 s60, s60, s57')
        a('s_add_u32 s60, s60, 32')
        a('s_lshl_b32 s60, s60, 7')
        a('s_and_b32 s62, s56, 31')
        a('s_lshl_b32 s62, s62, 2')
        a('s_add_u32 s60, s60, s62')
        a.wait(vm='st')
        a('buffer_store_dword v15, v43, s[64:67], s60 offen sc1')
        self.stamp()
        self.dump_stamps(40, 42)

    def role_f(self):
        from rolef import role_f
        role_f(self)


if __name__ == '__main__':
    diag = '--diag' in sys.argv
    out = [x for x in sys.argv[1:] if not x.startswith('--')]
    opts = {}
    for x in sys.argv[1:]:
        if x.startswith('--') and '=' in x:
            k, val = x[2:].split('=')
            opts[k] = int(val)
    g = G(diag, opts)
    txt = g.build()
    path = out[0] if out else f'cdna_kernels/{NAME}.s'
    open(path, 'w').write(txt)
    print(f'wrote {path}: {len(txt)} bytes, maxv={g.a.maxv} maxs={g.a.maxs} pads={g.a.npad}')
```
